```python
import torch

def _softmax(x, axis=-1):
    return torch.softmax(x, dim=axis)
def _gelu(x):
    return torch.nn.functional.gelu(x, approximate="tanh")
def _silu(x):
    return torch.nn.functional.silu(x)
def _sigmoid(x):
    return torch.sigmoid(x)
def _layernorm(x, axis=-1, eps=1e-5):
    m = x.mean(dim=axis, keepdim=True)
    v = x.var(dim=axis, keepdim=True, unbiased=False)
    return (x - m) / torch.sqrt(v + eps)
def _scatter_add(tgt, idx, src, axis=0):
    return tgt.clone().index_add_(axis, idx, src)
def _segment_sum(src, seg, n):
    out = torch.zeros((n,) + src.shape[1:], dtype=src.dtype)
    return out.index_add_(0, seg, src)
def _pad(x, pw):
    flat = tuple(v for pair in reversed(pw) for v in pair)
    return torch.nn.functional.pad(x, flat)

kernel_name = 'recurrent_scan__mha_block_cached__swiglu_ffn__decode'

def setup_inputs():

    _w = (lambda a: (lambda t: t.to(torch.bfloat16) if t.is_floating_point() else t)(torch.as_tensor(a)))
    def _A_setup():
        B, Sq, D = 2, 1, 512
        H, Sk, Dh = 32, 16384, 128
        return {
            "x": _w((lambda *s: torch.randn(*s, dtype=torch.bfloat16) * 0.05)(B, Sq, D)),
            "k_cache": _w((lambda *s: torch.randn(*s, dtype=torch.bfloat16) * 1.6)(B, H, Sk, Dh)),
            "v_cache": _w((lambda *s: torch.randn(*s, dtype=torch.bfloat16) * 0.2)(B, H, Sk, Dh)),
            "wq": _w((lambda *s: torch.randn(*s, dtype=torch.bfloat16) * 1.6)(D, H * Dh) * (D ** -0.5)),
            "wo": _w((lambda *s: torch.randn(*s, dtype=torch.bfloat16) * 0.2)(H * Dh, D) * ((H * Dh) ** -0.5)),
        }
    _A_in = _A_setup()

    def _B_setup():
        B, S, D, F = 2, 1, 512, 1792
        return {
            "x": _w((lambda *s: torch.randn(*s, dtype=torch.bfloat16) * 0.05)(B, S, D)),
            "w_gate": _w((lambda *s: torch.randn(*s, dtype=torch.bfloat16) * 0.1)(D, F)),
            "w_up": _w((lambda *s: torch.randn(*s, dtype=torch.bfloat16) * 0.1)(D, F)),
            "w_down": _w((lambda *s: torch.randn(*s, dtype=torch.bfloat16) * 0.1)(F, D)),
        }
    _B_in = _B_setup()

    return {
        "A_x": _A_in["x"],
        "A_k_cache": _A_in["k_cache"],
        "A_v_cache": _A_in["v_cache"],
        "A_wq": _A_in["wq"],
        "A_wo": _A_in["wo"],
        "B_x": _B_in["x"],
        "B_w_gate": _B_in["w_gate"],
        "B_w_up": _B_in["w_up"],
        "B_w_down": _B_in["w_down"],
    }

def reference(A_x, A_k_cache, A_v_cache, A_wq, A_wo, B_x, B_w_gate, B_w_up, B_w_down):
    def _A_ref(x, k_cache, v_cache, wq, wo):
        B, Sq, D = x.shape
        H, Dh = 32, 128
        q = (lambda x, *d: x.permute(*d))((x @ wq).reshape(B, Sq, H, Dh), 0, 2, 1, 3)
        scores = torch.einsum("bhqd,bhkd->bhqk", q, k_cache) * (Dh ** -0.5)
        p = _softmax(scores, axis=-1)
        o = torch.einsum("bhqk,bhkd->bhqd", p, v_cache)
        return (lambda x, *d: x.permute(*d))(o, 0, 2, 1, 3).reshape(B, Sq, H * Dh) @ wo

    def _B_ref(x, w_gate, w_up, w_down):
        g = _silu(x @ w_gate)
        u = x @ w_up
        return (g * u) @ w_down

    x = A_x
    xn = _layernorm(x, axis=-1)
    s = _A_ref(xn, A_k_cache, A_v_cache, A_wq, A_wo)
    g = _silu(_B_ref(xn, B_w_gate, B_w_up, B_w_down))
    return x + s * g
```

```python
import re

TRANS = ("v_exp_f32", "v_log_f32", "v_rcp_f32", "v_rsq_f32", "v_sqrt_f32", "v_sin_f32", "v_cos_f32")

def _regs(tok):
    tok = tok.strip()
    tok = tok.lstrip("-")
    m = re.match(r"^abs\((.*)\)$", tok)
    if m: tok = m.group(1)
    m = re.match(r"^\|(.*)\|$", tok)
    if m: tok = m.group(1)
    m = re.match(r"^([vsa])(\d+)$", tok)
    if m: return {(m.group(1), int(m.group(2)))}
    m = re.match(r"^([vsa])\[(\d+):(\d+)\]$", tok)
    if m: return {(m.group(1), i) for i in range(int(m.group(2)), int(m.group(3)) + 1)}
    if tok in ("vcc", "vcc_lo", "vcc_hi"): return {("vcc", 0)}
    if tok in ("exec", "exec_lo", "exec_hi"): return {("exec", 0)}
    if tok == "m0": return {("m0", 0)}
    return set()

class Ins:
    def __init__(self, text):
        self.text = text
        t = text.split(";")[0].strip()
        self.is_label = t.endswith(":")
        self.is_dir = t.startswith(".")
        self.op = t.split()[0] if t else ""
        rest = t[len(self.op):].strip()
        parts = [p.strip() for p in rest.split(",")] if rest else []
        self.mods = ""
        if parts:
            last = parts[-1].split()
            if last:
                parts[-1] = last[0]
                self.mods = " ".join(last[1:])
        if "quad_perm" in t or "op_sel" in t or "neg_lo" in t or "neg_hi" in t:
            idx = min([t.index(k) for k in ("quad_perm", "op_sel", "neg_lo", "neg_hi") if k in t])
            head = t[len(self.op):idx].strip()
            parts = [p.strip() for p in head.split(",")]
            last = parts[-1].split()
            parts[-1] = last[0]
            self.mods = " ".join(last[1:]) + " " + t[idx:]
        self.ops = parts
        op = self.op
        self.valu = op.startswith("v_")
        self.mfma = op.startswith("v_mfma")
        self.dot = op.startswith("v_dot")
        self.trans = any(op.startswith(x) for x in TRANS)
        self.dpp = self.valu and ("row_" in self.mods or "quad_perm" in self.mods or "wave_" in self.mods or op.endswith("_dpp"))
        self.permlane = op.startswith("v_permlane")
        self.readlane = op.startswith("v_readlane") or op.startswith("v_readfirstlane")
        self.writelane = op.startswith("v_writelane")
        self.vmem = op.startswith("buffer_") or op.startswith("global_") or op.startswith("flat_")
        self.ds = op.startswith("ds_")
        self.salu = op.startswith("s_")
        self.w = set(); self.r = set()
        R = [_regs(p) for p in parts]
        if self.valu:
            if op.startswith("v_cmp"):
                self.w |= R[0]
                for x in R[1:]: self.r |= x
                if op.startswith("v_cmpx"): self.w |= {("exec", 0)}
            elif self.permlane and "swap" in op:
                self.w |= R[0] | R[1]; self.r |= R[0] | R[1]
            elif op.startswith(("v_add_co", "v_sub_co", "v_addc_co", "v_subb_co", "v_subrev_co", "v_div_scale", "v_mad_u64")):
                self.w |= R[0] | R[1]
                for x in R[2:]: self.r |= x
            elif op == "v_nop":
                pass
            else:
                self.w |= R[0]
                for x in R[1:]: self.r |= x
                if op.startswith(("v_fmac", "v_dot2c", "v_mac", "v_pk_fmac", "v_writelane")) or self.dpp or "sdwa" in op:
                    self.r |= R[0]
                if op.startswith("v_cndmask") and len(parts) == 3: self.r |= {("vcc", 0)}
                if op.startswith("v_div_fmas"): self.r |= {("vcc", 0)}
            if self.mfma:
                self.srcc = R[3]; self.srcab = R[1] | R[2]
        elif self.vmem:
            if "load" in op and " lds" not in (" " + self.mods):
                self.w |= R[0]
                for x in R[1:]: self.r |= x
            elif "atomic" in op:
                for x in R: self.r |= x
                if "sc0" in self.mods: self.w |= R[0]
            elif op in ("buffer_wbl2", "buffer_inv"):
                pass
            else:
                for x in R: self.r |= x
                if "lds" in self.mods or "_lds_" in op: self.r |= {("m0", 0)}
            self.store_data = set()
            if "store" in op and ("x3" in op or "x4" in op):
                self.store_data = R[0] if op.startswith("buffer_") else R[1]
        elif self.ds:
            if op.startswith(("ds_read", "ds_bpermute", "ds_permute", "ds_swizzle")) or "_rtn" in op:
                self.w |= R[0]
                for x in R[1:]: self.r |= x
            else:
                for x in R: self.r |= x
        elif self.salu:
            if op.startswith(("s_cmp", "s_cbranch", "s_branch", "s_waitcnt", "s_nop", "s_barrier", "s_sleep", "s_endpgm", "s_setprio", "s_setpc", "s_bitcmp")):
                for x in R: self.r |= x
            else:
                if R: self.w |= R[0]
                for x in R[1:]: self.r |= x
                if "saveexec" in op: self.w |= {("exec", 0)}
        self.states = 1
        if op == "s_nop": self.states = int(parts[0], 0) + 1
        if self.is_label or self.is_dir or not op: self.states = 0

def passes(op):
    if "16x16x32" in op or "16x16x16" in op: return 4
    if "32x32x16" in op or "32x32x8" in op: return 8
    if "4x4x4" in op: return 2
    if "16x16x4_f32" in op: return 8
    raise ValueError(op)

def need(p, c):
    n = 0
    vw = {x for x in p.w if x[0] in ("v", "a")}
    sw = {x for x in p.w if x[0] in ("s", "vcc")}
    cv_r = {x for x in c.r if x[0] in ("v", "a")}
    cv_w = {x for x in c.w if x[0] in ("v", "a")}
    cs_r = {x for x in c.r if x[0] in ("s", "vcc")}
    if p.mfma:
        ps = passes(p.op)
        big = {2: 5, 4: 8, 8: 12, 16: 20}[ps]
        if c.mfma:
            if vw & c.srcab: n = max(n, big)
            if vw & c.srcc:
                if c.srcc == vw and passes(c.op) == ps: n = max(n, 2 if ps == 2 else 0)
                else: n = max(n, {2: 4, 4: 6, 8: 10, 16: 18}[ps])
            elif vw & cv_w: n = max(n, big)
        elif (c.valu or c.vmem or c.ds) and (vw & (cv_r | cv_w)): n = max(n, big)
        if c.valu and not c.mfma and (p.srcc & cv_w): n = max(n, {2: 1, 4: 3, 8: 7, 16: 15}[ps])
        return n
    if p.valu:
        if p.dot:
            if c.valu and (vw & (cv_r | cv_w)):
                same = c.dot and c.op.replace("_e32", "").replace("_e64", "") == p.op.replace("_e32", "").replace("_e64", "")
                if same:
                    ab = set()
                    for t in c.ops[1:3]: ab |= _regs(t)
                    if vw & ab: n = max(n, 3)
                else:
                    n = max(n, 3)
            if (c.vmem or c.ds) and (vw & cv_r): n = max(n, 3)
        if c.mfma and (vw & cv_r): n = max(n, 2)
        if c.dpp and (vw & cv_r): n = max(n, 2)
        if c.permlane and (vw & cv_r): n = max(n, 2)
        if c.readlane and (vw & cv_r): n = max(n, 1)
        if p.trans and c.valu and not c.trans and (vw & cv_r): n = max(n, 1)
        if p.trans and (c.vmem or c.ds) and (vw & cv_r): n = max(n, 1)
        if sw:
            if c.valu and (sw & cs_r):
                n = max(n, 4 if (c.readlane or c.writelane or c.op.startswith("v_div_fmas")) else 2)
            if c.vmem and (sw & cs_r): n = max(n, 5)
            if c.salu and (sw & cs_r): n = max(n, 1)
        if ("exec", 0) in p.w:
            if c.dpp: n = max(n, 5)
            if c.mfma or c.permlane or c.readlane or c.writelane: n = max(n, 4)
        if "sdwa" in p.op or "op_sel" in p.mods:
            if c.valu and (vw & (cv_r | cv_w)): n = max(n, 1)
    if p.vmem and p.store_data and (p.store_data & cv_w):
        n = max(n, 2 if c.valu else 1)
    if p.salu and ("m0", 0) in p.w and ("m0", 0) in c.r: n = max(n, 1)
    if p.salu and ("exec", 0) in p.w and c.dpp: n = max(n, 1)
    return n

class Asm:
    def __init__(self):
        self.lines = []
    def __call__(self, text):
        for t in text.split("\n"):
            t = t.strip()
            if t: self.lines.append(t)
    def label(self, name): self.lines.append(name + ":")
    def pad(self):
        out = []
        hist = []
        for t in self.lines:
            ins = Ins(t)
            if ins.states == 0 or t.startswith(";"):
                out.append(t); continue
            req = 0
            dist = 0
            for p in reversed(hist):
                if dist >= 20: break
                k = need(p, ins) - dist
                if k > req: req = k
                dist += p.states
            while req > 0:
                k = min(req, 16)
                nop = Ins(f"s_nop {k-1}")
                out.append(nop.text); hist.append(nop)
                req -= k
            out.append(t); hist.append(ins)
            if len(hist) > 40: hist = hist[-30:]
        self.lines = out
    def text(self):
        return "\n".join(("" if (l.endswith(":") or l.startswith(".") or l.startswith(";")) else "    ") + l for l in self.lines) + "\n"
```

```python
import sys
from asmlib import Asm
KNAME = "recurrent_scan__mha_block_cached__swiglu_ffn__decode_kernel"
HEADER = open("recurrent_scan__mha_block_cached__swiglu_ffn__decode.s.ref").read().split("; Override launch")[0]

INBOX = 0x100000
WS_A = INBOX
WS_F = INBOX + 0x80000
WS_ML = INBOX + 0xA0000
FULL = "row_mask:0xf bank_mask:0xf"
L_Q, L_O, L_ML, L_RANK, L_CNT, L_FP, L_STASH = 0, 2048, 6144, 6176, 6180, 8192, 16384
LDS_BYTES = L_STASH + 131072

def gen(path, X=4, stamps=False, kvflags="nt", wflags="nt", prio=3, SH=6, no_ffn=False, no_wo=False, no_final=False, NC=16,
        poll_sleep=2):
    D = 2
    a = Asm()
    def stamp(idx):
        if not stamps: return
        a(f"""s_memrealtime s[98:99]
        s_waitcnt lgkmcnt(0)
        s_lshl_b32 s93, s2, 6
        v_mov_b32 v60, s98
        v_mov_b32 v61, s99
        v_mov_b32 v62, s93
        s_mov_b64 s[94:95], exec
        s_mov_b64 exec, 1
        buffer_store_dwordx2 v[60:61], v62, s[20:23], 0 offen offset:{idx*8}
        s_mov_b64 exec, s[94:95]""")
    uid = [0]
    def stamp_w(idx, wave):
        if not stamps: return
        uid[0] += 1
        a(f"s_cmp_lg_u32 s3, {wave}\ns_cbranch_scc1 L_st{uid[0]}")
        stamp(idx)
        a.label(f"L_st{uid[0]}")
    def rsum(regs, tmp, op="v_add_f32"):
        for rot in (8, 4, 2, 1):
            for r in regs: a(f"{op}_dpp {r}, {r}, {r} row_ror:{rot} {FULL}")
        xrow(regs, tmp, op)
    def xrow(regs, tmp, op="v_add_f32", which=("v_permlane16_swap_b32", "v_permlane32_swap_b32")):
        for sw in which:
            for r, t in zip(regs, tmp): a(f"v_mov_b32 {t}, {r}")
            for r, t in zip(regs, tmp): a(f"{sw} {r}, {t}")
            for r, t in zip(regs, tmp): a(f"{op} {r}, {r}, {t}")
    def merge4(sets):
        for y, t0, t1, dst in sets:
            a(f"v_add_f32_dpp {t0}, {y[0]}, {y[0]} row_ror:8 {FULL}")
            a(f"v_add_f32_dpp {t1}, {y[1]}, {y[1]} row_ror:8 {FULL}")
        for y, t0, t1, dst in sets:
            a(f"v_add_f32_dpp {t0}, {y[2]}, {y[2]} row_ror:8 row_mask:0xf bank_mask:0xc")
            a(f"v_add_f32_dpp {t1}, {y[3]}, {y[3]} row_ror:8 row_mask:0xf bank_mask:0xc")
        for y, t0, t1, dst in sets: a(f"v_add_f32_dpp {dst}, {t0}, {t0} row_half_mirror {FULL}")
        for y, t0, t1, dst in sets: a(f"v_add_f32_dpp {dst}, {t1}, {t1} row_half_mirror row_mask:0xf bank_mask:0xa")
        for y, t0, t1, dst in sets: a(f"v_add_f32_dpp {dst}, {dst}, {dst} quad_perm:[1,0,3,2] {FULL}")
        for y, t0, t1, dst in sets: a(f"v_add_f32_dpp {dst}, {dst}, {dst} quad_perm:[2,3,0,1] {FULL}")
    def rbf(dst, src):
        a(f"v_cvt_pk_bf16_f32 {dst}, {src}, {src}")
        a(f"v_and_b32 {dst}, s14, {dst}")
    def rbfs(regs):
        for r in regs: a(f"v_cvt_pk_bf16_f32 {r}, {r}, {r}")
        for r in regs: a(f"v_and_b32 {r}, s14, {r}")
    def srd(n, lo, size, add=None):
        if add is None:
            a(f"s_mov_b32 s{n}, s{lo}\ns_mov_b32 s{n+1}, s{lo+1}")
        else:
            a(f"s_add_u32 s{n}, s{lo}, {add}\ns_addc_u32 s{n+1}, s{lo+1}, 0")
        a(f"s_mov_b32 s{n+2}, {size}\ns_mov_b32 s{n+3}, 0x20000")
    def silus(xs, ts):
        for x, t in zip(xs, ts): a(f"v_mul_f32 {t}, s16, {x}")
        for x, t in zip(xs, ts): a(f"v_exp_f32 {t}, -{t}")
        for x, t in zip(xs, ts): a(f"v_add_f32 {t}, 1.0, {t}")
        for x, t in zip(xs, ts): a(f"v_rcp_f32 {t}, {t}")
        for x, t in zip(xs, ts): a(f"v_mul_f32 {x}, {x}, {t}")
        rbfs(xs)
    def masks():
        a("v_and_b32 v2, 7, v3")
        a("v_mov_b32 v36, 0xffff\nv_mov_b32 v37, s14")
        for j in range(4):
            a(f"""v_cmp_eq_u32 s[88:89], {2*j}, v2
            v_cmp_eq_u32 vcc, {2*j+1}, v2
            v_cndmask_b32 v{8+j}, 0, v36, s[88:89]
            v_cndmask_b32 v{8+j}, v{8+j}, v37, vcc""")
    def call(reg): a(f"s_swappc_b64 s[60:61], s[{reg}:{reg+1}]")

    a.label(KNAME)
    a("""s_cmp_ge_u32 s2, 256
    s_cbranch_scc1 L_end
    s_load_dwordx16 s[64:79], s[0:1], 0
    s_load_dwordx8 s[80:87], s[0:1], 64
    v_lshrrev_b32 v1, 6, v0
    v_and_b32 v3, 63, v0
    v_readfirstlane_b32 s3, v1
    v_lshlrev_b32 v1, 4, v3
    s_and_b32 s54, s2, 7
    s_lshr_b32 s55, s2, 3
    s_and_b32 s56, s55, 3
    s_bfe_u32 s57, s55, 0x10002
    s_and_b32 s58, s55, 24
    s_or_b32 s58, s58, s54
    s_mov_b32 s14, 0xffff0000
    s_mov_b32 s15, 0x3db504f3
    s_mov_b32 s16, 0x3fb8aa3b
    s_lshr_b32 s59, s58, 1
    s_add_u32 s59, s59, 12
    s_bitcmp1_b32 s58, 0
    s_cselect_b32 s59, 63, s59
    s_cmp_lt_u32 s58, 24
    s_cselect_b32 s97, s58, s59
    s_cmp_eq_u32 s57, 0
    s_cselect_b32 s97, s97, 63""")
    if no_ffn: a("s_mov_b32 s97, 63")
    a("""s_cmp_ge_u32 s3, 4
    s_cbranch_scc1 L_aux""")
    a(f"""s_lshl_b32 s17, s56, 6
    s_mov_b32 s18, 64
    s_cmp_ge_u32 s97, 28
    s_cbranch_scc1 L_wsh
    s_mul_i32 s17, s56, {64 + SH // 3}
    s_sub_u32 s17, s17, {SH + SH // 3}
    s_mov_b32 s18, {64 + SH // 3}
    s_cmp_eq_u32 s56, 0
    s_cselect_b32 s17, 0, s17
    s_cselect_b32 s18, {64 - SH}, s18""")
    a.label("L_wsh")
    a("""s_lshl_b32 s59, s57, 5
    s_add_u32 s59, s59, s58
    s_lshl_b32 s59, s59, 8
    s_add_u32 s59, s59, s17
    s_lshl_b32 s59, s59, 14
    s_lshl_b32 s17, s18, 14
    s_lshl_b32 s12, s3, 12
    s_waitcnt lgkmcnt(0)""")
    srd(4, 66, "s17", "s59")
    srd(8, 68, "s17", "s59")
    RING = 64
    def kreg(buf, u): return RING + buf * 32 + 4 * u
    def vreg(buf, u): return RING + buf * 32 + 16 + 4 * u
    def ldk(buf):
        for u in range(4):
            r = kreg(buf, u)
            a(f"buffer_load_dwordx4 v[{r}:{r+3}], v1, s[4:7], s12 offen offset:{u*1024} {kvflags}")
    def ldv(buf):
        for u in range(4):
            r = vreg(buf, u)
            a(f"buffer_load_dwordx4 v[{r}:{r+3}], v1, s[8:11], s12 offen offset:{u*1024} {kvflags}")
    if stamps:
        srd(20, 86, 0x40000000)
        stamp_w(0, 0)
    for buf in range(D + X):
        ldk(buf); ldv(buf)
        a("s_add_u32 s12, s12, 0x4000")
    srd(44, 84, 256)
    masks()
    a(f"""v_mov_b32 v12, 0
    v_mov_b32 v13, 0
    v_mov_b32 v14, 0
    v_mov_b32 v15, 0
    v_mov_b32 v16, 0xff800000
    v_mov_b32 v17, 0xff800000
    v_mov_b32 v18, 0
    v_and_b32 v2, 15, v3
    v_lshlrev_b32 v2, 5, v2
    s_sub_u32 s13, s18, {X}
    s_lshr_b32 s13, s13, 1
    s_mov_b32 s19, 1
    s_lshl_b32 s59, s57, 2
    v_mov_b32 v56, s59
    v_mov_b32 v57, 1
    s_getpc_b64 s[28:29]""")
    a.label("L_pcw")
    a("""s_add_u32 s28, s28, L_newmax-L_pcw
    s_addc_u32 s29, s29, 0
    s_barrier""")
    for w in range(4):
        a(f"ds_read_b128 v[{20+8*w}:{23+8*w}], v2 offset:{L_Q + w*512}")
        a(f"ds_read_b128 v[{24+8*w}:{27+8*w}], v2 offset:{L_Q + w*512+16}")
    a("s_waitcnt lgkmcnt(0)")
    for e in range(8):
        a(f"v_add_f32 v{20+e}, v{20+e}, v{28+e}")
        a(f"v_add_f32 v{36+e}, v{36+e}, v{44+e}")
    for e in range(8):
        a(f"v_add_f32 v{20+e}, v{20+e}, v{36+e}")
    for j in range(4):
        a(f"v_cvt_pk_bf16_f32 v{4+j}, v{20+2*j}, v{21+2*j}")
    stamp_w(1, 0)
    stubs = []
    def tile(buf, reload):
        if reload: a(f"s_waitcnt vmcnt({8*D-4})")
        for j in range(4):
            for u in range(4):
                r = kreg(buf, u) + j
                if j == 0: a(f"v_dot2_f32_bf16 v{20+u}, v{r}, v4, 0")
                else: a(f"v_dot2_f32_bf16 v{20+u}, v{r}, v{4+j}, v{20+u}")
        if reload: ldk(buf)
        merge4([(["v20", "v21", "v22", "v23"], "v24", "v25", "v26")])
        rbf("v26", "v26")
        a("v_mul_f32 v26, s15, v26")
        rbf("v26", "v26")
        a("v_cmp_gt_f32 vcc, v26, v17")
        a(f"s_cbranch_vccnz L_nm{buf}")
        a.label(f"L_back{buf}")
        stubs.append(buf)
        a("v_fma_f32 v27, v26, s16, -v16")
        a("v_exp_f32 v27, v27")
        if reload: a(f"s_waitcnt vmcnt({8*D-4})")
        a("v_add_f32 v18, v18, v27")
        a("v_cvt_pk_bf16_f32 v27, v27, v27")
        def prep(u):
            B = 28 + 4 * (u & 1)
            for j in range(4):
                a(f"v_and_b32_dpp v{B+j}, v27, v{8+j} row_newbcast:{4*u} {FULL}")
        def mm(u):
            B = 28 + 4 * (u & 1); r = vreg(buf, u)
            a(f"v_mfma_f32_16x16x32_bf16 v[12:15], v[{r}:{r+3}], v[{B}:{B+3}], v[12:15]")
        prep(0); prep(1); mm(0); prep(2); mm(1); prep(3); mm(2); mm(3)
        if reload:
            ldv(buf)
            a("s_add_u32 s12, s12, 0x4000")
    a.label("L_loop")
    a("""s_cmp_lg_u32 s13, 1
    s_cbranch_scc1 L_norank
    s_cmp_lg_u32 s3, 0
    s_cbranch_scc1 L_norank
    s_mov_b64 exec, 1
    buffer_atomic_add v57, v56, s[44:47], 0 offen offset:128 sc0 sc1
    s_mov_b64 exec, -1""")
    a.label("L_norank")
    for buf in range(D): tile(buf, True)
    if X:
        a("""s_cmp_eq_u32 s19, 0
        s_cbranch_scc1 L_noextra
        s_mov_b32 s19, 0""")
        for buf in range(D, D + X): tile(buf, False)
        a.label("L_noextra")
    a("""s_sub_u32 s13, s13, 1
    s_cmp_lg_u32 s13, 0
    s_cbranch_scc1 L_loop""")
    a(f"v_add_f32_dpp v18, v18, v18 row_ror:8 {FULL}")
    a(f"v_add_f32_dpp v18, v18, v18 row_ror:4 {FULL}")
    xrow(["v18"], ["v19"])
    a(f"""s_lshl_b32 s59, s3, 10
    v_add_u32 v2, s59, v1
    s_nop 4
    ds_write_b128 v2, v[12:15] offset:{L_O}
    s_lshl_b32 s59, s3, 3
    v_mov_b32 v2, s59
    v_mov_b32 v17, v18
    ds_write_b64 v2, v[16:17] offset:{L_ML}
    s_cmp_lg_u32 s3, 0
    s_cbranch_scc1 L_wend
    s_waitcnt vmcnt(16)
    s_mov_b64 exec, 1
    ds_write_b32 v2, v57 offset:{L_RANK}
    s_mov_b64 exec, -1""")
    stamp(2)
    a.label("L_wend")
    a("s_waitcnt lgkmcnt(0)\ns_barrier\ns_endpgm")
    for buf in stubs:
        a.label(f"L_nm{buf}")
        a(f"s_swappc_b64 s[30:31], s[28:29]\ns_branch L_back{buf}")
    a.label("L_newmax")
    a("s_nop 7")
    a(f"v_max_f32_dpp v36, v26, v26 row_ror:8 {FULL}")
    a(f"v_max_f32_dpp v36, v36, v36 row_ror:4 {FULL}")
    xrow(["v36"], ["v37"], "v_max_f32")
    a("""v_max_f32 v17, v17, v36
    v_mul_f32 v37, s16, v17
    v_sub_f32 v38, v16, v37
    v_exp_f32 v38, v38
    v_mov_b32 v16, v37
    v_mul_f32 v12, v12, v38
    v_mul_f32 v13, v13, v38
    v_mul_f32 v14, v14, v38
    v_mul_f32 v15, v15, v38
    v_mul_f32 v18, v18, v38
    s_setpc_b64 s[30:31]""")

    a.label("L_aux")
    if prio: a(f"s_setprio {prio}")
    a("""s_sub_u32 s3, s3, 4
    s_lshl_b32 s17, s57, 10
    s_xor_b32 s18, s17, 1024
    v_lshlrev_b32 v4, 2, v3
    s_lshl_b32 s19, s3, 8
    s_add_u32 s28, s19, s18
    s_add_u32 s19, s19, s17
    v_lshrrev_b32 v5, 4, v3
    v_and_b32 v6, 15, v3
    v_lshlrev_b32 v2, 18, v5
    v_lshl_add_u32 v2, v6, 4, v2
    s_lshl_b32 s52, s3, 20
    s_lshl_b32 s53, s58, 8
    s_add_u32 s52, s52, s53
    s_movk_i32 s53, 0x2000
    s_getpc_b64 s[62:63]""")
    a.label("L_pc0")
    a("""s_add_u32 s32, s62, L_gemv-L_pc0
    s_addc_u32 s33, s63, 0
    s_add_u32 s62, s62, L_load32-L_pc0
    s_addc_u32 s63, s63, 0
    s_waitcnt lgkmcnt(0)""")
    srd(24, 64, 2048)
    a("""buffer_load_dwordx4 v[40:43], v1, s[24:27], s17 offen
    buffer_load_dwordx4 v[44:47], v1, s[24:27], s18 offen
    buffer_load_dword v48, v4, s[24:27], s19 offen
    buffer_load_dword v49, v4, s[24:27], s28 offen""")
    srd(48, 70, 512 * 4096 * 2)
    call(62)
    srd(20, 86, 0x40000000)
    srd(44, 84, 256)
    masks()
    a(f"v_mov_b32 v7, 0\nds_write_b32 v7, v7 offset:{L_CNT}")
    a("s_waitcnt vmcnt(32)")
    for bb, src in ((0, 40), (1, 44)):
        for j in range(4):
            a(f"v_lshlrev_b32 v{64+8*bb+2*j}, 16, v{src+j}")
            a(f"v_and_b32 v{65+8*bb+2*j}, s14, v{src+j}")
    for bb in range(2):
        o = 64 + 8 * bb
        a(f"v_add_f32 v{50+bb}, v{o}, v{o+1}")
    for e in range(2, 8):
        for bb in range(2):
            a(f"v_add_f32 v{50+bb}, v{50+bb}, v{64+8*bb+e}")
    rsum(["v50", "v51"], ["v52", "v53"])
    a("s_mov_b32 s59, 0x3b000000")
    a("v_mul_f32 v50, s59, v50\nv_mul_f32 v51, s59, v51")
    for e in range(8):
        for bb in range(2):
            a(f"v_sub_f32 v{64+8*bb+e}, v{64+8*bb+e}, v{50+bb}")
    for bb in range(2):
        a(f"v_mul_f32 v{54+bb}, v{64+8*bb}, v{64+8*bb}")
    for e in range(1, 8):
        for bb in range(2):
            a(f"v_fmac_f32 v{54+bb}, v{64+8*bb+e}, v{64+8*bb+e}")
    rsum(["v54", "v55"], ["v52", "v53"])
    a("s_mov_b32 s88, 0x3727c5ac")
    R = ["v54", "v55"]
    for r in R: a(f"v_mul_f32 {r}, s59, {r}")
    rbfs(R + ["v50", "v51"])
    for r in R: a(f"v_add_f32 {r}, s88, {r}")
    rbfs(R)
    for r in R: a(f"v_sqrt_f32 {r}, {r}")
    a("""v_lshlrev_b32 v26, 16, v48
    v_and_b32 v27, s14, v48
    v_lshlrev_b32 v22, 16, v49
    v_and_b32 v23, s14, v49""")
    rbfs(R)
    for r in R: a(f"v_rcp_f32 {r}, {r}")
    a("""v_sub_f32 v26, v26, v50
    v_sub_f32 v27, v27, v50
    v_sub_f32 v22, v22, v51
    v_sub_f32 v23, v23, v51""")
    rbfs(["v26", "v27", "v22", "v23"])
    a("""v_mul_f32 v26, v26, v54
    v_mul_f32 v27, v27, v54
    v_mul_f32 v22, v22, v55
    v_mul_f32 v23, v23, v55
    v_cvt_pk_bf16_f32 v26, v26, v26
    v_cvt_pk_bf16_f32 v27, v27, v27
    v_cvt_pk_bf16_f32 v22, v22, v22
    v_cvt_pk_bf16_f32 v23, v23, v23
    s_lshl_b32 s59, s3, 9
    v_lshlrev_b32 v7, 7, v5
    v_lshl_add_u32 v7, v6, 2, v7
    v_add_u32 v7, s59, v7
    s_mov_b32 s90, 0x00ff00ff
    s_mov_b32 s91, 0x00ff00ff""")
    call(32)
    a(f"""s_mov_b64 exec, s[90:91]
    ds_write_b32 v7, v12 offset:{L_Q}
    ds_write_b32 v7, v13 offset:{L_Q+32}
    ds_write_b32 v7, v14 offset:{L_Q+64}
    ds_write_b32 v7, v15 offset:{L_Q+96}
    s_mov_b64 exec, -1
    s_waitcnt lgkmcnt(0)
    s_barrier""")
    srd(48, 72, 4096 * 512 * 2)
    a("""v_lshlrev_b32 v2, 15, v5
    v_lshl_add_u32 v2, v6, 4, v2
    s_lshl_b32 s52, s58, 17
    s_lshl_b32 s53, s3, 8
    s_add_u32 s52, s52, s53
    s_movk_i32 s53, 0x400""")
    if not no_wo: call(62)
    a("""s_cmp_lg_u32 s3, 0
    s_cbranch_scc1 L_noclr""")
    a(f"""s_lshl_b32 s28, s2, 11
    s_add_u32 s28, s28, {WS_A}
    s_lshl_b32 s29, s2, 9
    s_add_u32 s29, s29, {WS_F}
    s_lshl_b32 s30, s2, 3
    s_add_u32 s30, s30, {WS_ML}
    s_cmp_eq_u32 s54, 7
    s_cselect_b32 s31, 0, -1
    v_mov_b32 v64, -1
    v_mov_b32 v65, -1
    v_mov_b32 v66, -1
    v_mov_b32 v67, -1
    v_mov_b32 v68, s31
    v_mov_b32 v69, s31
    v_mov_b32 v70, s31
    v_mov_b32 v71, s31
    buffer_store_dwordx4 v[64:67], v1, s[20:23], s28 offen sc1
    buffer_store_dwordx4 v[64:67], v1, s[20:23], s28 offen offset:1024 sc1
    s_mov_b64 exec, 0xffffffff
    s_mov_b32 exec_hi, 0
    buffer_store_dwordx4 v[68:71], v1, s[20:23], s29 offen sc1
    s_mov_b64 exec, 1
    buffer_store_dwordx2 v[64:65], v1, s[20:23], s30 offen sc1
    v_mov_b32 v74, 1
    s_waitcnt vmcnt(0)
    buffer_atomic_add v74, v1, s[44:47], 0 offen sc1
    s_mov_b64 exec, -1""")
    a.label("L_noclr")
    a("""s_cmp_lg_u32 s56, 0
    s_cbranch_scc1 L_noffn
    s_cmp_ge_u32 s97, 28
    s_cbranch_scc1 L_noffn""")
    a(f"""s_lshl_b32 s59, s3, 15
    v_add_u32 v24, s59, v1
    v_add_u32 v24, {L_STASH}, v24
    v_mov_b32 v20, v26
    v_mov_b32 v21, v27
    s_waitcnt vmcnt(0)""")
    for i in range(32):
        a(f"ds_write_b128 v24, v[{128+4*i}:{131+4*i}] offset:{i*1024}")
    a(f"""s_mov_b32 s59, {32*3584}
    v_mul_lo_u32 v2, v5, s59
    v_and_b32 v25, 7, v6
    v_lshl_add_u32 v2, v25, 4, v2
    s_mul_i32 s28, s3, {128*3584}
    s_lshl_b32 s29, s97, 7
    s_add_u32 s28, s28, s29
    s_movk_i32 s53, 3584
    s_lshl_b32 s59, s3, 10
    v_lshlrev_b32 v7, 7, v5
    v_lshl_add_u32 v7, v6, 2, v7
    v_add_u32 v7, s59, v7
    s_mov_b32 s88, 0x00ff00ff
    s_mov_b32 s89, 0
    s_waitcnt lgkmcnt(0)""")
    for mat in range(2):
        srd(48, 76 + 2 * mat, 512 * 1792 * 2)
        a("s_mov_b32 s52, s28")
        call(62)
        for bb in range(2):
            a(f"v_mov_b32 v26, v{20+2*bb}\nv_mov_b32 v27, v{21+2*bb}")
            call(32)
            o = L_FP + (mat * 2 + bb) * 256
            a(f"""s_mov_b64 exec, s[88:89]
            ds_write_b32 v7, v12 offset:{o}
            ds_write_b32 v7, v13 offset:{o+32}
            ds_write_b32 v7, v14 offset:{o+64}
            ds_write_b32 v7, v15 offset:{o+96}
            s_mov_b64 exec, -1""")
    srd(48, 80, 1792 * 512 * 2)
    a(f"""v_lshlrev_b32 v2, 15, v5
    v_lshl_add_u32 v2, v6, 4, v2
    v_cmp_gt_u32 vcc, 32, v3
    v_mov_b32 v25, 0x40000000
    v_cndmask_b32 v2, v25, v2, vcc
    s_lshl_b32 s52, s97, 16
    s_lshl_b32 s53, s3, 8
    s_add_u32 s52, s52, s53
    s_movk_i32 s53, 0x400
    v_mov_b32 v25, 0
    v_mov_b32 v40, 1
    s_waitcnt lgkmcnt(0)
    s_mov_b64 exec, 1
    ds_add_u32 v25, v40 offset:{L_CNT}
    s_mov_b64 exec, -1""")
    call(62)
    a("s_mov_b32 s31, 0x40000")
    a.label("L_fsync")
    a(f"""ds_read_b32 v40, v25 offset:{L_CNT}
    s_waitcnt lgkmcnt(0)
    v_readfirstlane_b32 s30, v40
    s_cmp_ge_u32 s30, 4
    s_cbranch_scc1 L_fsync_done
    s_sleep 2
    s_sub_u32 s31, s31, 1
    s_cmp_lg_u32 s31, 0
    s_cbranch_scc1 L_fsync""")
    a.label("L_fsync_done")
    a("v_and_b32 v7, 31, v3\nv_lshlrev_b32 v7, 3, v7")
    for w in range(4):
        for mb in range(4):
            r = 64 + (w * 4 + mb) * 2
            a(f"ds_read_b64 v[{r}:{r+1}], v7 offset:{L_FP + w*1024 + mb*256}")
    a("s_waitcnt lgkmcnt(0)")
    for k in range(8):
        a(f"v_add_f32 v{64+k}, v{64+k}, v{72+k}")
        a(f"v_add_f32 v{80+k}, v{80+k}, v{88+k}")
    for k in range(8):
        a(f"v_add_f32 v{64+k}, v{64+k}, v{80+k}")
    rbfs([f"v{64+k}" for k in range(8)])
    silus([f"v{64+k}" for k in range(4)], [f"v{72+k}" for k in range(4)])
    for k in range(4): a(f"v_mul_f32 v{64+k}, v{64+k}, v{68+k}")
    a("v_cvt_pk_bf16_f32 v26, v64, v64\nv_cvt_pk_bf16_f32 v27, v65, v65")
    call(32)
    a("""v_mov_b32 v40, v12
    v_mov_b32 v41, v13
    v_mov_b32 v42, v14
    v_mov_b32 v43, v15
    v_cvt_pk_bf16_f32 v26, v66, v66
    v_cvt_pk_bf16_f32 v27, v67, v67""")
    call(32)
    for i in range(32):
        a(f"ds_read_b128 v[{128+4*i}:{131+4*i}], v24 offset:{i*1024}")
    a(f"""s_mov_b32 s30, 0xfffffffe
    v_cndmask_b32 v40, v12, v40, s[90:91]
    v_cndmask_b32 v41, v13, v41, s[90:91]
    v_cndmask_b32 v42, v14, v42, s[90:91]
    v_cndmask_b32 v43, v15, v43, s[90:91]
    v_min_u32 v40, s30, v40
    v_min_u32 v41, s30, v41
    v_min_u32 v42, s30, v42
    v_min_u32 v43, s30, v43
    v_lshrrev_b32 v44, 3, v6
    v_lshl_add_u32 v44, v44, 4, v5
    v_lshlrev_b32 v44, 12, v44
    v_and_b32 v45, 7, v6
    v_lshl_add_u32 v44, v45, 4, v44
    s_lshl_b32 s28, s3, 14
    s_lshl_b32 s29, s97, 7
    s_add_u32 s28, s28, s29
    s_add_u32 s28, s28, {WS_F}
    s_mov_b32 s29, 1
    s_branch L_pollc0""")
    a.label("L_noffn")
    a("""s_cmp_lg_u32 s3, 0
    s_cbranch_scc1 L_tail
    v_mov_b32 v44, 0
    s_mov_b32 s29, 0
    s_mov_b32 s28, 0
    s_sleep 127
    s_sleep 127""")
    a.label("L_pollc0")
    a("s_mov_b32 s31, 0x4000\nv_mov_b32 v75, 0")
    a.label("L_pollc")
    a("""buffer_load_dword v74, v75, s[44:47], 0 offen sc1
    s_waitcnt vmcnt(0)
    v_readfirstlane_b32 s30, v74
    s_cmp_ge_u32 s30, 256
    s_cbranch_scc1 L_pollc_done
    s_sleep 64
    s_sub_u32 s31, s31, 1
    s_cmp_lg_u32 s31, 0
    s_cbranch_scc1 L_pollc""")
    a.label("L_pollc_done")
    a("""s_cmp_eq_u32 s29, 0
    s_cbranch_scc1 L_tail
    buffer_store_dwordx4 v[40:43], v44, s[20:23], s28 offen sc1""")
    stamp_w(5, 1)

    a.label("L_tail")
    a(f"""v_lshlrev_b32 v46, 14, v5
    v_lshl_add_u32 v46, v6, 4, v46
    s_lshl_b32 s92, s57, 18
    s_lshl_b32 s93, s3, 16
    s_add_u32 s92, s92, s93
    s_lshl_b32 s93, s58, 2
    s_add_u32 s93, s93, s56
    s_lshl_b32 s96, s93, 7
    s_add_u32 s96, s96, s92
    s_add_u32 s96, s96, {WS_A}
    s_lshl_b32 s93, s93, 3
    s_lshl_b32 s34, s57, 10
    s_add_u32 s34, s34, {WS_ML}
    s_add_u32 s35, s34, s93
    v_and_b32 v34, 3, v6
    v_lshlrev_b32 v34, 5, v34
    v_lshl_add_u32 v34, v5, 8, v34
    v_lshrrev_b32 v35, 2, v6
    v_lshl_add_u32 v64, v35, 2, v34
    v_add_u32 v64, {L_O}, v64
    v_add_u32 v65, 1024, v64
    v_add_u32 v66, 2048, v64
    v_add_u32 v67, 3072, v64
    v_mov_b32 v47, 0
    v_and_b32 v68, 31, v3
    v_lshrrev_b32 v69, 5, v3
    v_lshlrev_b32 v70, 9, v68
    v_lshl_add_u32 v70, v69, 4, v70
    v_lshlrev_b32 v71, 5, v68
    v_lshlrev_b32 v72, 7, v68
    v_lshl_add_u32 v72, v69, 4, v72
    v_bfe_u32 v73, v3, 2, 2
    v_lshlrev_b32 v73, 4, v73
    v_lshl_add_u32 v73, v69, 1, v73
    s_mov_b32 s30, 0xfffffffe""")
    srd(40, 82, 2048)
    a(f"""s_waitcnt vmcnt(0) lgkmcnt(0)
    s_barrier
    ds_read_b128 v[76:79], v47 offset:{L_ML}
    ds_read_b128 v[48:51], v47 offset:{L_ML+16}""")
    for w in range(4):
        a(f"ds_read2_b32 v[{52+2*w}:{53+2*w}], v{64+w} offset0:0 offset1:4")
    a(f"ds_read_b32 v38, v47 offset:{L_RANK}")
    a("s_waitcnt lgkmcnt(5)")
    a("""v_max3_f32 v36, v76, v78, v48
    v_max_f32 v36, v36, v50
    v_sub_f32 v76, v76, v36
    v_sub_f32 v78, v78, v36
    v_sub_f32 v48, v48, v36
    v_sub_f32 v50, v50, v36
    v_exp_f32 v76, v76
    v_exp_f32 v78, v78
    v_exp_f32 v48, v48
    v_exp_f32 v50, v50
    s_waitcnt lgkmcnt(0)
    v_mul_f32 v26, v52, v76
    v_mul_f32 v27, v53, v76
    v_fmac_f32 v26, v54, v78
    v_fmac_f32 v27, v55, v78
    v_fmac_f32 v26, v56, v48
    v_fmac_f32 v27, v57, v48
    v_fmac_f32 v26, v58, v50
    v_fmac_f32 v27, v59, v50
    v_cvt_pk_bf16_f32 v26, v26, v26
    v_cvt_pk_bf16_f32 v27, v27, v27
    v_readfirstlane_b32 s36, v38""")
    call(32)
    a("""v_min_u32 v12, s30, v12
    v_min_u32 v13, s30, v13
    v_min_u32 v14, s30, v14
    v_min_u32 v15, s30, v15
    s_mov_b64 exec, s[90:91]
    buffer_store_dwordx4 v[12:15], v46, s[20:23], s96 offen sc1
    s_mov_b64 exec, -1
    s_cmp_lg_u32 s3, 0
    s_cbranch_scc1 L_noml
    v_mul_f32 v37, v77, v76
    v_fmac_f32 v37, v79, v78
    v_fmac_f32 v37, v49, v48
    v_fmac_f32 v37, v51, v50
    v_min_u32 v36, s30, v36
    v_min_u32 v37, s30, v37
    s_mov_b64 exec, 1
    buffer_store_dwordx2 v[36:37], v47, s[20:23], s35 offen sc1
    s_mov_b64 exec, -1""")
    stamp(3)
    a.label("L_noml")
    if no_final: a("s_endpgm")
    a(f"""s_cmp_lt_u32 s36, {128 - NC}
    s_cbranch_scc1 L_end
    s_sub_u32 s36, s36, {128 - NC}
    s_and_b32 s36, s36, 15
    s_lshl_b32 s37, s57, 4
    s_add_u32 s36, s36, s37
    s_lshl_b32 s37, s3, 5
    s_lshl_b32 s38, s36, 14
    s_add_u32 s38, s38, s37
    s_add_u32 s38, s38, {WS_A}
    s_lshl_b32 s39, s36, 12
    s_add_u32 s39, s39, s37
    s_add_u32 s39, s39, {WS_F}
    s_lshl_b32 s36, s36, 6
    s_lshl_b32 s37, s3, 2
    s_add_u32 s36, s36, s37
    buffer_load_ushort v74, v73, s[24:27], s36 offen
    s_mov_b32 s31, 0x8000""")
    a.label("L_polla")
    for q in range(4):
        a(f"buffer_load_dwordx4 v[{80+4*q}:{83+4*q}], v70, s[20:23], s38 offen offset:{q*128} sc1")
    a("""buffer_load_dwordx4 v[96:99], v71, s[20:23], s34 offen sc1
    buffer_load_dwordx4 v[100:103], v71, s[20:23], s34 offen offset:16 sc1
    buffer_load_dwordx4 v[104:107], v72, s[20:23], s39 offen sc1
    s_waitcnt vmcnt(0)""")
    a("v_max3_u32 v75, v80, v81, v82")
    a("v_max3_u32 v108, v83, v84, v85")
    for k in range(86, 106, 4):
        a(f"v_max3_u32 v75, v75, v{k}, v{k+1}")
        a(f"v_max3_u32 v108, v108, v{k+2}, v{k+3}")
    a("v_max3_u32 v75, v75, v106, v107")
    a("v_max_u32 v75, v75, v108")
    a(f"""v_cmp_eq_u32 vcc, -1, v75
    s_cbranch_vccz L_polla_done
    s_sleep {poll_sleep}
    s_sub_u32 s31, s31, 1
    s_cmp_lg_u32 s31, 0
    s_cbranch_scc1 L_polla""")
    a.label("L_polla_done")
    a("""v_max3_f32 v108, v96, v98, v100
    v_max_f32 v108, v108, v102
    v_sub_f32 v96, v96, v108
    v_sub_f32 v98, v98, v108
    v_sub_f32 v100, v100, v108
    v_sub_f32 v102, v102, v108
    v_exp_f32 v96, v96
    v_exp_f32 v98, v98
    v_exp_f32 v100, v100
    v_exp_f32 v102, v102
    v_mul_f32 v109, v97, v96
    v_fmac_f32 v109, v99, v98
    v_fmac_f32 v109, v101, v100
    v_fmac_f32 v109, v103, v102
    v_rcp_f32 v109, v109""")
    for r in range(4): a(f"v_mul_f32 v{80+r}, v{80+r}, v96")
    for q in range(1, 4):
        for r in range(4): a(f"v_fmac_f32 v{80+r}, v{80+4*q+r}, v{96+2*q}")
    for r in range(4): a(f"v_mul_f32 v{80+r}, v{80+r}, v109")
    merge4([(["v104", "v105", "v106", "v107"], "v86", "v87", "v111"), (["v80", "v81", "v82", "v83"], "v84", "v85", "v110")])
    xrow(["v111", "v110"], ["v84", "v85"], which=("v_permlane16_swap_b32",))
    rbfs(["v111", "v110"])
    silus(["v111"], ["v84"])
    a("v_lshlrev_b32 v74, 16, v74")
    a("v_mul_f32 v110, v110, v111")
    rbf("v110", "v110")
    a("v_add_f32 v110, v110, v74")
    a("v_cvt_pk_bf16_f32 v110, v110, v110")
    a("""s_mov_b32 exec_lo, 0x1111
    s_mov_b32 exec_hi, 0x1111
    buffer_store_short v110, v73, s[40:43], s36 offen""")
    if stamps:
        a("s_mov_b64 exec, -1")
        stamp_w(4, 0)
    a.label("L_end")
    a("s_endpgm")
    a.label("L_load32")
    for i in range(32):
        r = 128 + 4 * i
        a(f"buffer_load_dwordx4 v[{r}:{r+3}], v2, s[48:51], s52 offen {wflags}")
        if i < 31: a("s_add_u32 s52, s52, s53")
    a("s_setpc_b64 s[60:61]")
    a.label("L_gemv")
    a("s_nop 1")
    def gprep(i):
        kk, z = i >> 1, i & 1
        B = 28 + 4 * (i & 1)
        for j in range(4):
            a(f"v_and_b32_dpp v{B+j}, v{26+z}, v{8+j} row_newbcast:{kk} {FULL}")
    gprep(0)
    for i in range(32):
        if i < 31: gprep(i + 1)
        B = 28 + 4 * (i & 1)
        r = 128 + 4 * i
        if i % 4 == 0: a(f"s_waitcnt vmcnt({28-i})")
        c = "0" if i == 0 else "v[12:15]"
        a(f"v_mfma_f32_16x16x32_bf16 v[12:15], v[{r}:{r+3}], v[{B}:{B+3}], {c}")
    a("s_nop 7")
    a("s_setpc_b64 s[60:61]")
    a.pad()
    txt = HEADER
    txt += "; Override launch geometry by editing the next line\n"
    txt += f"; @launch grid=(256,1,1) block=(512,1,1) lds={LDS_BYTES}\n"
    txt += '.amdgcn_target "amdgcn-amd-amdhsa--gfx950"\n.text\n'
    txt += f".globl {KNAME}\n.p2align 8\n.type {KNAME},@function\n"
    txt += a.text()
    txt += f""".section .rodata,"a"
.p2align 6
.amdhsa_kernel {KNAME}
  .amdhsa_next_free_vgpr 256
  .amdhsa_next_free_sgpr 102
  .amdhsa_accum_offset 256
  .amdhsa_group_segment_fixed_size 0
  .amdhsa_kernarg_size 96
  .amdhsa_user_sgpr_count 2
  .amdhsa_user_sgpr_kernarg_segment_ptr 1
  .amdhsa_system_sgpr_workgroup_id_x 1
  .amdhsa_float_denorm_mode_32 3
.end_amdhsa_kernel
"""
    open(path, "w").write(txt)

if __name__ == "__main__":
    gen("k2.s")
    gen("k2s.s", stamps=True)
    gen("k2x0s.s", stamps=True, X=0)
    gen("k2x2s.s", stamps=True, X=2)
    gen("k2sh0s.s", stamps=True, SH=0)
    gen("k2nfs.s", stamps=True, no_ffn=True, no_final=True)
```
